```python
import torch

def _softmax(x, axis=-1):
    return torch.softmax(x, dim=axis)
def _gelu(x):
    return torch.nn.functional.gelu(x, approximate="tanh")
def _silu(x):
    return torch.nn.functional.silu(x)
def _sigmoid(x):
    return torch.sigmoid(x)
def _layernorm(x, axis=-1, eps=1e-5):
    m = x.mean(dim=axis, keepdim=True)
    v = x.var(dim=axis, keepdim=True, unbiased=False)
    return (x - m) / torch.sqrt(v + eps)
def _scatter_add(tgt, idx, src, axis=0):
    return tgt.clone().index_add_(axis, idx, src)
def _segment_sum(src, seg, n):
    out = torch.zeros((n,) + src.shape[1:], dtype=src.dtype)
    return out.index_add_(0, seg, src)
def _pad(x, pw):
    flat = tuple(v for pair in reversed(pw) for v in pair)
    return torch.nn.functional.pad(x, flat)

kernel_name = 'concat_heads__mha_block_cached__mha_block_cached__near_ridge'

def setup_inputs():

    _w = (lambda a: (lambda t: t.to(torch.bfloat16) if t.is_floating_point() else t)(torch.as_tensor(a)))
    def _A_setup():
        B, Sq, D = 8, 128, 448
        H, Sk, Dh = 16, 512, 256
        return {
            "x": _w((lambda *s: torch.randn(*s, dtype=torch.bfloat16) * 0.8)(B, Sq, D)),
            "k_cache": _w((lambda *s: torch.randn(*s, dtype=torch.bfloat16) * 0.8)(B, H, Sk, Dh)),
            "v_cache": _w((lambda *s: torch.randn(*s, dtype=torch.bfloat16) * 0.05)(B, H, Sk, Dh)),
            "wq": _w((lambda *s: torch.randn(*s, dtype=torch.bfloat16) * 0.8)(D, H * Dh) * (D ** -0.5)),
            "wo": _w((lambda *s: torch.randn(*s, dtype=torch.bfloat16) * 0.05)(H * Dh, D) * ((H * Dh) ** -0.5)),
        }
    _A_in = _A_setup()

    def _B_setup():
        B, Sq, D = 8, 128, 448
        H, Sk, Dh = 16, 512, 256
        return {
            "x": _w((lambda *s: torch.randn(*s, dtype=torch.bfloat16) * 0.8)(B, Sq, D)),
            "k_cache": _w((lambda *s: torch.randn(*s, dtype=torch.bfloat16) * 0.8)(B, H, Sk, Dh)),
            "v_cache": _w((lambda *s: torch.randn(*s, dtype=torch.bfloat16) * 0.05)(B, H, Sk, Dh)),
            "wq": _w((lambda *s: torch.randn(*s, dtype=torch.bfloat16) * 0.8)(D, H * Dh) * (D ** -0.5)),
            "wo": _w((lambda *s: torch.randn(*s, dtype=torch.bfloat16) * 0.05)(H * Dh, D) * ((H * Dh) ** -0.5)),
        }
    _B_in = _B_setup()

    return {
        "A_x": _A_in["x"],
        "A_k_cache": _A_in["k_cache"],
        "A_v_cache": _A_in["v_cache"],
        "A_wq": _A_in["wq"],
        "A_wo": _A_in["wo"],
        "B_x": _B_in["x"],
        "B_k_cache": _B_in["k_cache"],
        "B_v_cache": _B_in["v_cache"],
        "B_wq": _B_in["wq"],
        "B_wo": _B_in["wo"],
    }

def reference(A_x, A_k_cache, A_v_cache, A_wq, A_wo, B_x, B_k_cache, B_v_cache, B_wq, B_wo):
    def _A_ref(x, k_cache, v_cache, wq, wo):
        B, Sq, D = x.shape
        H, Dh = 16, 256
        q = (lambda x, *d: x.permute(*d))((x @ wq).reshape(B, Sq, H, Dh), 0, 2, 1, 3)
        scores = torch.einsum("bhqd,bhkd->bhqk", q, k_cache) * (Dh ** -0.5)
        p = _softmax(scores, axis=-1)
        o = torch.einsum("bhqk,bhkd->bhqd", p, v_cache)
        return (lambda x, *d: x.permute(*d))(o, 0, 2, 1, 3).reshape(B, Sq, H * Dh) @ wo

    def _B_ref(x, k_cache, v_cache, wq, wo):
        B, Sq, D = x.shape
        H, Dh = 16, 256
        q = (lambda x, *d: x.permute(*d))((x @ wq).reshape(B, Sq, H, Dh), 0, 2, 1, 3)
        scores = torch.einsum("bhqd,bhkd->bhqk", q, k_cache) * (Dh ** -0.5)
        p = _softmax(scores, axis=-1)
        o = torch.einsum("bhqk,bhkd->bhqd", p, v_cache)
        return (lambda x, *d: x.permute(*d))(o, 0, 2, 1, 3).reshape(B, Sq, H * Dh) @ wo

    a = _A_ref(A_x, A_k_cache, A_v_cache, A_wq, A_wo)
    b = _B_ref(B_x, B_k_cache, B_v_cache, B_wq, B_wo)
    return torch.concatenate([a, b], axis=-1)
```

```python
import re
TRANS = ("v_exp_f32", "v_log_f32", "v_rcp_f32", "v_rsq_f32", "v_sqrt_f32", "v_sin_f32", "v_cos_f32")
def regs(tok):
    tok = tok.strip()
    tok = tok.lstrip("-")
    m = re.fullmatch(r"abs\((.*)\)", tok)
    if m: tok = m.group(1)
    m = re.fullmatch(r"([vas])(\d+)", tok)
    if m: return [(m.group(1), int(m.group(2)))]
    m = re.fullmatch(r"([vas])\[(\d+):(\d+)\]", tok)
    if m: return [(m.group(1), i) for i in range(int(m.group(2)), int(m.group(3)) + 1)]
    if tok == "vcc": return [("s", "vcc")]
    if tok == "m0": return [("s", "m0")]
    if tok == "exec": return [("s", "exec")]
    return []
class Ins:
    def __init__(self, text):
        self.text = text
        t = text.split(";")[0].strip()
        p = t.split(None, 1)
        self.op = p[0]
        rest = p[1] if len(p) > 1 else ""
        ops = [o.strip() for o in rest.split(",")] if rest else []
        mods = []
        if ops:
            q = ops[-1].split()
            ops[-1] = q[0]; mods = q[1:]
        self.ops = ops; self.mods = mods
        op = self.op
        R = lambda i: regs(ops[i]) if i < len(ops) else []
        self.cls = "other"; self.w = []; self.r = []; self.srcC = []; self.ab = []
        if op.startswith("v_mfma"):
            self.cls = "mfma"; self.w = R(0); self.ab = R(1) + R(2); self.srcC = R(3); self.r = self.ab + self.srcC
            self.passes = 8 if "32x32x16" in op else 4
        elif op.startswith("ds_read"):
            self.cls = "ds"; self.w = R(0); self.r = R(1)
        elif op.startswith("ds_write"):
            self.cls = "ds"; self.r = R(0) + R(1)
        elif op.startswith("buffer_load") and "lds" in mods:
            self.cls = "dma"; self.r = R(0) + R(1) + R(2) + [("s", "m0")]
        elif op.startswith("buffer_load"):
            self.cls = "vmem"; self.w = R(0); self.r = R(1) + R(2) + R(3)
        elif op.startswith("buffer_store"):
            self.cls = "store"; self.r = R(0) + R(1) + R(2) + R(3); self.data = R(0)
        elif op.startswith("buffer_atomic"):
            self.cls = "vmem"; self.r = R(0) + R(1) + R(2) + R(3); self.w = R(0) if "sc0" in mods else []
        elif op.startswith("buffer_"):
            self.cls = "vmem"
        elif op.startswith("v_permlane"):
            self.cls = "valu"; self.w = R(0) + R(1); self.r = R(0) + R(1)
        elif op.startswith("v_"):
            self.cls = "valu"; self.w = R(0); self.r = sum((R(i) for i in range(1, len(ops))), [])
            if op.startswith(("v_fmac", "v_dot2c")): self.r += R(0)
            if op.startswith("v_cndmask") and len(ops) == 3: self.r += [("s", "vcc")]
        elif op.startswith("s_"):
            self.cls = "salu"
            if op.startswith(("s_cmp", "s_cbranch", "s_branch", "s_waitcnt", "s_barrier", "s_nop", "s_sleep", "s_setprio", "s_endpgm", "s_setpc")):
                self.r = sum((R(i) for i in range(len(ops))), [])
            else:
                self.w = R(0); self.r = sum((R(i) for i in range(1, len(ops))), [])
            if op.startswith(("s_load", "s_memtime", "s_memrealtime")): self.cls = "smem"
class Emitter:
    def __init__(self):
        self.lines = []
        self.pos = 0
        self.reset()
        self.nops = 0
    def reset(self):
        self.valu_w = {}; self.mfma_w = {}; self.mfma_c = {}; self.trans_w = {}; self.salu_w = {}; self.store_d = {}
        self.mfma_d_id = {}
        self.ds_pend = []
        self.vm_pend = []
    def raw(self, s):
        self.lines.append(s)
    def label(self, s):
        self.lines.append(s + ":")
    def need(self, I):
        n = 0
        def req(d, r, k):
            nonlocal n
            if r in d: n = max(n, k - (self.pos - d[r] - 1))
        if I.cls == "mfma":
            for r in I.r: req(self.valu_w, r, 2)
            for r in I.ab:
                if r in self.mfma_w: p, ps = self.mfma_w[r]; n = max(n, {8: 12, 4: 8}[ps] - (self.pos - p - 1))
            if I.srcC:
                same = all(self.mfma_d_id.get(r) == (tuple(I.srcC), I.passes) for r in I.srcC)
                for r in I.srcC:
                    if r in self.mfma_w and not same:
                        p, ps = self.mfma_w[r]; n = max(n, {8: 10, 4: 6}[ps] - (self.pos - p - 1))
        if I.cls in ("valu", "ds", "dma", "vmem", "store"):
            for r in I.r + I.w:
                if r in self.mfma_w: p, ps = self.mfma_w[r]; n = max(n, {8: 12, 4: 8}[ps] - (self.pos - p - 1))
        if I.cls == "valu":
            for r in I.w:
                if r in self.mfma_c: p, ps = self.mfma_c[r]; n = max(n, {8: 7, 4: 3}[ps] - (self.pos - p - 1))
                req(self.store_d, r, 2)
            if I.op not in TRANS:
                for r in I.r: req(self.trans_w, r, 1)
            if I.op.startswith("v_permlane"):
                for r in I.r: req(self.valu_w, r, 2)
            if I.op.startswith(("v_readfirstlane", "v_readlane")):
                for r in I.r: req(self.valu_w, r, 1)
            for r in I.r:
                if r[0] == "s": req(self.valu_w, r, 2)
        if I.cls in ("ds", "vmem"):
            for r in I.w: req(self.store_d, r, 1)
        if I.cls in ("dma", "vmem", "store"):
            for r in I.r:
                if r[0] == "s": req(self.valu_w, r, 5)
        if I.cls == "dma":
            req(self.salu_w, ("s", "m0"), 1)
        return n
    def __call__(self, text, tag=None):
        I = Ins(text)
        for r in I.r + I.w:
            for d in self.ds_pend:
                assert r not in d, f"reg {r} used by '{text}' while ds op outstanding"
            for t_, d in self.vm_pend:
                assert r not in d, f"reg {r} used by '{text}' while vmem load outstanding"
        n = self.need(I)
        while n > 0:
            k = min(n, 16)
            self.lines.append(f"s_nop {k-1}"); self.pos += k; n -= k; self.nops += k
        self.lines.append(text)
        if I.op == "s_nop":
            self.pos += int(I.ops[0]) + 1
            return
        if I.op == "s_waitcnt":
            m = re.search(r"lgkmcnt\((\d+)\)", text)
            if m:
                k = int(m.group(1)); self.ds_pend = self.ds_pend[max(0, len(self.ds_pend)-k):] if k else []
                if k > len(self.ds_pend): pass
            m = re.search(r"vmcnt\((\d+)\)", text)
            if m:
                k = int(m.group(1))
                self.vm_pend = self.vm_pend[max(0, len(self.vm_pend)-k):] if k else []
        if I.cls == "ds": self.ds_pend.append(set(I.w))
        if I.cls in ("dma", "vmem", "store"): self.vm_pend.append((tag, set(I.w)))
        if I.cls == "valu":
            for r in I.w:
                self.valu_w[r] = self.pos
                self.mfma_w.pop(r, None); self.mfma_d_id.pop(r, None)
                if I.op in TRANS: self.trans_w[r] = self.pos
                else: self.trans_w.pop(r, None)
        if I.cls == "mfma":
            for r in I.w:
                self.mfma_w[r] = (self.pos, I.passes); self.mfma_d_id[r] = (tuple(I.w), I.passes)
            for r in I.srcC: self.mfma_c[r] = (self.pos, I.passes)
        if I.cls in ("salu", "smem"):
            for r in I.w: self.salu_w[r] = self.pos; self.valu_w.pop(r, None)
        if I.cls == "store" and len(I.data) >= 3:
            for r in I.data: self.store_d[r] = self.pos
        self.pos += 1
    def vm_after(self, tags):
        idx = -1
        for i, (t, _) in enumerate(self.vm_pend):
            if t in tags: idx = i
        return len(self.vm_pend) - 1 - idx
    def text(self):
        return "\n".join(self.lines) + "\n"
```

```python
import sys, struct, math
from emit import Emitter
BASE = "concat_heads__mha_block_cached__mha_block_cached__near_ridge"
KN = BASE + "_kernel"
def f2u(x): return struct.unpack("<I", struct.pack("<f", x))[0]
SL = 16384
SRD_X, SRD_K, SRD_V, SRD_W, SRD_O, SRD_P, SRD_D = 4, 8, 12, 16, 20, 24, 28
sW, sWB, sB, sH, sBR, sG, sHL = 32, 33, 34, 35, 36, 37, 38
sXo, sWo, sKo, sVo, sOo, sPo, sT = 40, 41, 42, 43, 44, 45, 46
sC, sTC, sIC, sFL = 48, 49, 50, 51
sRET = 52
aK = list(range(1, 9)); aV = list(range(9, 13)); aW = list(range(13, 17)); aX = list(range(17, 21))
aO = [[21, 22], [23, 24], [25, 26]]
oK = list(range(27, 31)); oV = [31, 32]; oW = list(range(33, 37)); oX = list(range(37, 41)); oO = list(range(41, 45)); oP = 45
vM, vTHR, vL0, vL1, vT, vT2, vF, vRL = 46, 47, 48, 49, 50, 51, 52, 53
T0, T1, T2, T3, T4, T5, T6, T7 = 54, 55, 56, 57, 58, 59, 60, 61
vLANE = 62
vS = [64, 80]; vTMP = 96; vP = [112, 120]; vOF = 64; vACC = 128; vST = 192
aFR = [0, 64]; aQ = 128; aXF = [192, 208]
KWIN, VWIN, WWIN, XWIN = 0, 3*SL, 6*SL, 4*SL
OWIN = [0, 4*SL, 8*SL]

def srd(n): return f"s[{n}:{n+3}]"
def vr(b, n): return f"v[{b}:{b+n-1}]"
def ar(b, n): return f"a[{b}:{b+n-1}]"

class Tile:
    def __init__(self, typ, idx, read_step):
        self.typ = typ; self.idx = idx; self.read_step = read_step; self.slot = None; self.issue_step = None
    def tag(self): return (self.typ, self.idx)

def plan(cfg):
    W = [Tile("W", m, m - 1) for m in range(14)]
    X = [Tile("X", i, 2*i - 1) for i in range(7)]
    qk = lambda j: 14 if j == 0 else 13 + 2*j
    pv = lambda j: 16 + 2*j if j < 15 else 45
    K = [Tile("K", j, qk(j) - 1) for j in range(16)]
    V = [Tile("V", j, pv(j) - 1) for j in range(16)]
    O = [Tile("O", m, 46 + m - 1) for m in range(14)]
    for t in W: t.slot = 6 + t.idx % 4
    for t in X: t.slot = 4 + t.idx % 2
    for t in K: t.slot = t.idx % 3
    for t in V: t.slot = 3 + t.idx % 3
    oslots = cfg.get("oslots", [6, 7, 8, 9, 1, 2, 0, 4, 5, 3, 6, 7, 8, 9])
    for t in O: t.slot = oslots[t.idx]
    allt = W + X + K + V + O
    for t in allt:
        prev = [p.read_step for p in allt if p.slot == t.slot and p.read_step < t.read_step]
        t.free = (max(prev) + 1) if prev else -2
    L = cfg.get("lead", 3); LQ = cfg.get("leadq", 3); LO = cfg.get("leado", 4)
    early = cfg.get("early", {})
    for t in allt:
        lead = {"W": LQ, "X": LQ, "K": L, "V": L, "O": LO}[t.typ]
        t.issue_step = max(t.free, t.read_step - lead, -2)
        if t.tag() in early: t.issue_step = max(t.free, early[t.tag()])
        assert t.issue_step < t.read_step
    order = {"X": 0, "W": 1, "K": 2, "V": 2, "O": 3}
    allt.sort(key=lambda t: (t.issue_step, t.read_step, order[t.typ]))
    for ty in "WXKVO":
        ids = [t.idx for t in allt if t.typ == ty]
        assert ids == sorted(ids), (ty, ids)
    return allt

def dma_items(t, cfg):
    pol = {"W": cfg.get("polw", ""), "X": cfg.get("polw", ""), "K": cfg.get("polkv", "nt"), "V": cfg.get("polkv", "nt"), "O": cfg.get("polo", "")}[t.typ]
    pol = (" " + pol) if pol else ""
    pre = [f"s_add_u32 m0, s{sWB}, {t.slot*SL}"]
    post = []
    if t.typ == "X":
        so, sr, vo = sXo, SRD_X, oX
        post = [f"s_add_u32 s{sXo}, s{sXo}, 128", f"s_cmp_eq_u32 s{sXo}, 896", f"s_cselect_b32 s{sXo}, 0, s{sXo}"]
    elif t.typ == "W":
        so, sr, vo = sWo, SRD_W, oW
        post = [f"s_add_u32 s{sWo}, s{sWo}, {32*8192}", f"s_cmp_eq_u32 s{sWo}, {448*8192}", f"s_cselect_b32 s{sWo}, 0, s{sWo}"]
    elif t.typ == "K":
        so, sr, vo = sKo, SRD_K, oK
        post = [f"s_add_u32 s{sKo}, s{sKo}, {SL}", f"s_and_b32 s{sKo}, s{sKo}, 0x3ffff"]
    elif t.typ == "V":
        so, sr, vo = sVo, SRD_V, [oV[0], oV[1], oV[0], oV[1]]
        post = [f"s_add_u32 s{sVo}, s{sVo}, {SL}", f"s_and_b32 s{sVo}, s{sVo}, 0x3ffff"]
    else:
        so, sr, vo = sOo, SRD_O, oO
        if t.idx % 2 == 0:
            post = [f"s_add_u32 s{sOo}, s{sOo}, {128*896}"]
        else:
            post = [f"s_sub_u32 s{sOo}, s{sOo}, {128*896 - 128}", f"s_cmp_eq_u32 s{sOo}, 896", f"s_cselect_b32 s{sOo}, 0, s{sOo}"]
    groups = []
    for i in range(4):
        g = []
        if i == 0: g += [(p, None) for p in pre]
        off = f" offset:{1024*i}" if i else ""
        g.append((f"buffer_load_dwordx4 v{vo[i]}, {srd(sr)}, s{so} offen{off}{pol} lds", t.tag()))
        if i == 3: g += [(p, None) for p in post]
        groups.append(g)
    return groups

def read_items(t):
    r = []
    fs = aFR[(t.read_step + 1) & 1]
    sb = t.slot * SL
    if t.typ == "X":
        xb = aXF[t.idx & 1]
        for j in range(4): r.append(f"ds_read_b128 {ar(xb+4*j,4)}, v{aX[j]} offset:{sb - XWIN}")
    elif t.typ == "K":
        for ks in range(16): r.append(f"ds_read_b128 {ar(fs+4*ks,4)}, v{aK[ks&7]} offset:{sb - KWIN + 256*(ks>>3)}")
    elif t.typ in "WV":
        a, win = (aW, WWIN) if t.typ == "W" else (aV, VWIN)
        for s in range(2):
            for dt in range(8):
                for tt in range(2):
                    row = 16*s + (4*tt if t.typ == "W" else 8*tt)
                    r.append(f"ds_read_b64_tr_b16 {ar(fs+4*(8*s+dt)+2*tt,2)}, v{a[dt&3]} offset:{sb - win + row*512 + 256*(dt>>2)}")
    else:
        wi = t.slot // 4
        for ks in range(8):
            for nt in range(2):
                for tt in range(2):
                    r.append(f"ds_read_b64_tr_b16 {ar(fs+4*(2*ks+nt)+2*tt,2)}, v{aO[wi][nt]} offset:{sb - OWIN[wi] + (16*ks+8*tt)*128}")
    for x in r:
        off = int(x.split("offset:")[1]); assert 0 <= off < 65536, x
    return r

MF = "v_mfma_f32_32x32x16_bf16"
def mfmas(m):
    fs = aFR[m & 1]
    out = []
    if m < 14:
        order = [(s, dt) for s in range(2) for dt in range(8)] if m < 13 else [(s, dt) for dt in range(8) for s in range(2)]
        xb = aXF[(m >> 1) & 1] + 8 * (m & 1)
        for s, dt in order:
            d = vr(vACC + 16*dt, 16)
            c = "0" if (m == 0 and s == 0) else d
            out.append(f"{MF} {d}, {ar(fs+4*(8*s+dt),4)}, {ar(xb+4*s,4)}, {c}")
    elif m < 46:
        if m == 14 or (m % 2 == 1 and m < 45):
            j = 0 if m == 14 else (m - 13) // 2
            d = vr(vS[j & 1], 16)
            for ks in range(16):
                out.append(f"{MF} {d}, {ar(fs+4*ks,4)}, {ar(aQ+4*ks,4)}, {'0' if ks == 0 else d}")
        else:
            j = 15 if m == 45 else (m - 16) // 2
            order = [(s, dt) for s in range(2) for dt in range(8)] if j < 15 else [(s, dt) for dt in range(8) for s in range(2)]
            for s, dt in order:
                d = vr(vACC + 16*dt, 16)
                c = "0" if (j == 0 and s == 0) else d
                out.append(f"{MF} {d}, {ar(fs+4*(8*s+dt),4)}, {vr(vP[j&1]+4*s,4)}, {c}")
    else:
        c_, kh = (m - 46) // 2, (m - 46) % 2
        for ks in range(8):
            for nt in range(2):
                d = vr(vACC + 32*(c_ & 1) + 16*nt, 16)
                c = "0" if (kh == 0 and ks == 0) else d
                out.append(f"{MF} {d}, {ar(fs+4*(2*ks+nt),4)}, {vr(vOF+4*(8*kh+ks),4)}, {c}")
    return out

def cost(t):
    if t.startswith(("v_exp", "v_rcp")): return 8
    if t.startswith("buffer_"): return 8
    return 4

def valu_items(cfg):
    Q = []
    G = lambda m, i: 16*m + i
    for dt in range(8):
        for s in range(2):
            for k in range(4):
                tmp = vTMP + (8*dt + 4*s + k) % 16
                a = vACC + 16*dt + 8*s + 2*k
                Q.append(([f"v_cvt_pk_bf16_f32 v{tmp}, v{a}, v{a+1}"], G(13, 2*dt+1) + 3, G(14, 2*dt+s)))
            for k in range(4):
                tmp = vTMP + (8*dt + 4*s + k) % 16
                Q.append(([f"v_accvgpr_write_b32 a{aQ+4*(2*dt+s)+k}, v{tmp}"], G(13, 2*dt+1) + 3, G(14, 2*dt+s)))
    for j in range(16):
        qs = 14 if j == 0 else 13 + 2*j
        ps = 16 + 2*j if j < 15 else 45
        rdy = G(qs, 15) + 3
        S = vS[j & 1]; P = vP[j & 1]
        nb_chk = G(qs + 1, 15)
        Q.append(([f"v_max3_f32 v{vT}, v{S}, v{S+1}, v{S+2}"], rdy, nb_chk))
        for k in range(6): Q.append(([f"v_max3_f32 v{vT}, v{vT}, v{S+3+2*k}, v{S+4+2*k}"], rdy, nb_chk))
        Q.append(([f"v_max_f32 v{vT}, v{vT}, v{S+15}"], rdy, nb_chk))
        if j == 0:
            Q.append(([f"v_mov_b32 v{vT2}, v{vT}", f"v_permlane32_swap_b32 v{vT}, v{vT2}", f"v_max_f32 v{vT}, v{vT}, v{vT2}",
                       f"v_mul_f32 v{vM}, s{sC}, v{vT}", f"v_add_f32 v{vTHR}, s{sTC}, v{vT}"], rdy, nb_chk))
        else:
            Q.append(([f"v_cmp_gt_f32 vcc, v{vT}, v{vTHR}", f"s_cbranch_vccnz L_r1_{j}", f"L_b1_{j}:"], rdy, nb_chk))
        for h in range(8):
            nb = G(ps, 0) if (h < 4 or j == 15) else G(ps, 8)
            a, b = S + 2*h, S + 2*h + 1
            Q.append(([f"v_fma_f32 v{a}, v{a}, s{sC}, -v{vM}"], rdy, nb))
            Q.append(([f"v_fma_f32 v{b}, v{b}, s{sC}, -v{vM}"], rdy, nb))
            Q.append(([f"v_exp_f32 v{a}, v{a}"], rdy, nb))
            Q.append(([f"v_exp_f32 v{b}, v{b}"], rdy, nb))
            if j == 0 and h == 0:
                Q.append(([f"v_mov_b32 v{vL0}, v{a}"], rdy, nb)); Q.append(([f"v_mov_b32 v{vL1}, v{b}"], rdy, nb))
            else:
                Q.append(([f"v_add_f32 v{vL0}, v{vL0}, v{a}"], rdy, nb)); Q.append(([f"v_add_f32 v{vL1}, v{vL1}, v{b}"], rdy, nb))
            Q.append(([f"v_cvt_pk_bf16_f32 v{P+h}, v{a}, v{b}"], rdy, nb))
    Q.append(([f"v_add_f32 v{vL0}, v{vL0}, v{vL1}"], G(45, 0), G(46, 0)))
    Q.append(([f"v_mov_b32 v{vL1}, v{vL0}", f"v_permlane32_swap_b32 v{vL0}, v{vL1}", f"v_add_f32 v{vL0}, v{vL0}, v{vL1}", f"v_rcp_f32 v{vRL}, v{vL0}"], G(45, 0), G(46, 0)))
    for dt in range(8):
        for s in range(2):
            f = 2*dt + s
            nb = G(46, 0) if dt < 2 else (G(46, 2*f) if f < 8 else G(47, 2*(f-8)))
            for k in range(4):
                a = vACC + 16*dt + 8*s + 2*k
                Q.append(([f"v_cvt_pk_bf16_f32 v{vOF+4*f+k}, v{a}, v{a+1}"], G(45, 2*dt+1) + 3, nb))
    st = cfg.get("polst", "sc1"); st = (" " + st) if st else ""
    for c in range(7):
        rdy = G(47 + 2*c, 15) + 3; nb = G(50 + 2*c, 0)
        for nt in range(2):
            for s in range(2):
                a = vACC + 32*(c & 1) + 16*nt + 8*s
                sg = vST + 16*(c & 3) + 4*(2*nt + s)
                for k in range(8): Q.append(([f"v_mul_f32 v{a+k}, v{a+k}, v{vRL}"], rdy, nb))
                for k in range(4): Q.append(([f"v_cvt_pk_bf16_f32 v{sg+k}, v{a+2*k}, v{a+2*k+1}"], rdy, nb))
                off = f" offset:{256*(2*nt+s)}" if (nt or s) else ""
                l = [f"buffer_store_dwordx4 {vr(sg,4)}, v{oP}, {srd(SRD_P)}, s{sPo} offen{off}{st}"]
                if nt == 1 and s == 1:
                    l += [f"s_add_u32 s{sPo}, s{sPo}, {SL}", f"s_cmp_eq_u32 s{sPo}, {7*SL}", f"s_cselect_b32 s{sPo}, 0, s{sPo}"]
                Q.append((l, rdy, nb))
    return Q

def prologue_scalar(E, cfg):
    e = E
    e("s_cmp_ge_u32 s2, 256"); e("s_cbranch_scc1 L_end")
    e(f"s_lshr_b32 s{sBR}, s2, 2"); e(f"s_and_b32 s{sBR}, s{sBR}, 1")
    e(f"s_mul_i32 s3, s{sBR}, 40"); e("s_add_u32 s60, s0, s3"); e("s_addc_u32 s61, s1, 0")
    e("s_load_dwordx8 s[72:79], s[60:61], 0"); e("s_load_dwordx2 s[80:81], s[60:61], 32"); e("s_load_dwordx2 s[82:83], s[0:1], 96")
    e(f"s_and_b32 s{sH}, s2, 3"); e(f"s_lshr_b32 s{sB}, s2, 3"); e(f"s_and_b32 s{sB}, s{sB}, 7"); e(f"s_lshr_b32 s{sHL}, s2, 6")
    e(f"s_lshl_b32 s{sH}, s{sH}, 2"); e(f"s_add_u32 s{sH}, s{sH}, s{sHL}")
    e(f"s_lshl_b32 s{sG}, s{sBR}, 3"); e(f"s_add_u32 s{sG}, s{sG}, s{sB}")
    e(f"v_lshrrev_b32 v{T0}, 6, v0"); e(f"v_and_b32 v{vLANE}, 63, v0"); e(f"v_readfirstlane_b32 s{sW}, v{T0}")
    if cfg.get("rotq", True):
        e(f"s_lshl_b32 s3, s{sHL}, 1"); e(f"s_add_u32 s3, s3, s{sB}")
        e("s_cmp_ge_u32 s3, 7"); e("s_cselect_b32 s62, 7, 0"); e("s_sub_u32 s3, s3, s62")
    else:
        e("s_mov_b32 s3, 0")
    e(f"s_lshl_b32 s{sXo}, s3, 7"); e(f"s_lshl_b32 s{sWo}, s3, 19")
    if cfg.get("rotkv", True):
        e(f"s_lshr_b32 s3, s2, 3"); e(f"s_add_u32 s3, s3, s2"); e("s_and_b32 s3, s3, 15")
    else:
        e("s_mov_b32 s3, 0")
    e(f"s_lshl_b32 s{sKo}, s3, 14"); e(f"s_mov_b32 s{sVo}, s{sKo}")
    if cfg.get("roto", True):
        e(f"s_cmp_eq_u32 s{sB}, 7"); e(f"s_cselect_b32 s3, 0, s{sB}")
    else:
        e("s_mov_b32 s3, 0")
    e(f"s_lshl_b32 s{sOo}, s3, 7"); e(f"s_lshl_b32 s{sPo}, s3, 14")
    c = math.log2(math.e) / 16.0
    T = cfg.get("T", 8.0)
    e(f"s_mov_b32 s{sC}, {hex(f2u(c))}"); e(f"s_mov_b32 s{sTC}, {hex(f2u(T/c))}"); e(f"s_mov_b32 s{sIC}, {hex(f2u(1.0/c))}"); e(f"s_mov_b32 s{sFL}, 0")
    e(f"s_lshl_b32 s{sWB}, s{sW}, 12")

def prologue_srd(E):
    e = E
    e("s_waitcnt lgkmcnt(0)")
    def mk(d, p, offexpr_reg, size):
        e(f"s_add_u32 s{d}, s{p}, {offexpr_reg}"); e(f"s_addc_u32 s{d+1}, s{p+1}, 0"); e(f"s_mov_b32 s{d+2}, {size}"); e(f"s_mov_b32 s{d+3}, 0x20000")
    e(f"s_mul_i32 s3, s{sB}, 114688"); mk(SRD_X, 72, "s3", 114688)
    e(f"s_lshl_b32 s3, s{sH}, 9"); mk(SRD_W, 78, "s3", 447*8192 + 512)
    e(f"s_lshl_b32 s3, s{sB}, 4"); e(f"s_add_u32 s3, s3, s{sH}"); e("s_lshl_b32 s3, s3, 18")
    mk(SRD_K, 74, "s3", 262144); mk(SRD_V, 76, "s3", 262144)
    e(f"s_mul_i32 s3, s{sH}, {256*896}"); mk(SRD_O, 80, "s3", 256*896)
    e(f"s_mul_i32 s3, s{sG}, {16*7*SL}"); e(f"s_lshl_b32 s62, s{sH}, 10"); e("s_add_u32 s3, s3, s62"); mk(SRD_P, 82, "s3", 16*7*SL - 15*1024)

def addr_dma_xw(E):
    e = E; L = vLANE
    e(f"v_lshrrev_b32 v{T0}, 3, v{L}"); e(f"s_lshl_b32 s3, s{sW}, 5"); e(f"v_add_u32 v{T0}, s3, v{T0}")
    e(f"v_mul_u32_u24 v{T0}, 896, v{T0}")
    e(f"v_and_b32 v{T1}, 7, v{L}"); e(f"v_lshrrev_b32 v{T2}, 4, v{L}"); e(f"v_xor_b32 v{T2}, v{T1}, v{T2}")
    e(f"v_lshl_add_u32 v{oX[0]}, v{T2}, 4, v{T0}")
    e(f"v_xor_b32 v{T2}, 4, v{T2}"); e(f"v_lshl_add_u32 v{oX[1]}, v{T2}, 4, v{T0}"); e(f"v_add_u32 v{oX[1]}, 6144, v{oX[1]}")
    e(f"v_add_u32 v{oX[2]}, {2*6144}, v{oX[0]}"); e(f"v_add_u32 v{oX[3]}, {2*6144}, v{oX[1]}")
    e(f"v_lshrrev_b32 v{T3}, 5, v{L}")
    e(f"s_lshl_b32 s3, s{sW}, 3"); e(f"v_add_u32 v{T4}, s3, v{T3}")
    e(f"v_and_b32 v{T5}, 31, v{L}"); e(f"v_lshlrev_b32 v{T6}, 2, v{T3}"); e(f"v_xor_b32 v{T6}, v{T5}, v{T6}")
    e(f"v_lshlrev_b32 v{T6}, 4, v{T6}")
    e(f"v_xor_b32 v{T7}, 128, v{T6}")
    e(f"v_lshl_add_u32 v{oW[0]}, v{T4}, 13, v{T6}"); e(f"v_lshl_add_u32 v{oW[1]}, v{T4}, 13, v{T7}"); e(f"v_add_u32 v{oW[1]}, 15360, v{oW[1]}")
    e(f"v_add_u32 v{oW[2]}, {2*15360}, v{oW[0]}"); e(f"v_add_u32 v{oW[3]}, {2*15360}, v{oW[1]}")
    e(f"v_lshl_add_u32 v{oV[0]}, v{T4}, 9, v{T6}"); e(f"v_lshl_add_u32 v{oV[1]}, v{T4}, 9, v{T7}")
    for i in range(4):
        e(f"v_add_u32 v{T6}, {2*i}, v{T4}"); e(f"v_and_b32 v{T6}, 15, v{T6}"); e(f"v_xor_b32 v{T6}, v{T5}, v{T6}"); e(f"v_lshlrev_b32 v{T6}, 4, v{T6}")
        e(f"v_lshl_add_u32 v{oK[i]}, v{T4}, 9, v{T6}")
    e(f"v_lshrrev_b32 v{T2}, 2, v{L}"); e(f"v_and_b32 v{T2}, 4, v{T2}"); e(f"v_xor_b32 v{T2}, v{T1}, v{T2}")
    e(f"v_lshl_add_u32 v{oO[0]}, v{T2}, 4, v{T0}")
    for i in range(1, 4): e(f"v_add_u32 v{oO[i]}, {6144*i}, v{oO[0]}")

def addr_read(E):
    e = E; L = vLANE
    e(f"v_lshrrev_b32 v{T3}, 5, v{L}")
    e(f"v_and_b32 v{T5}, 31, v{L}")
    e(f"s_lshl_b32 s3, s{sW}, 12"); e(f"s_add_u32 s3, s3, {XWIN}")
    e(f"v_lshlrev_b32 v{T0}, 7, v{T5}"); e(f"v_add_u32 v{T0}, s3, v{T0}")
    e(f"v_bfe_u32 v{T1}, v{L}, 1, 3"); e(f"v_xor_b32 v{T1}, v{T1}, v{T3}")
    for j in range(4):
        e(f"v_xor_b32 v{T2}, {2*j}, v{T1}"); e(f"v_lshl_add_u32 v{aX[j]}, v{T2}, 4, v{T0}")
    e(f"v_bfe_u32 v{T0}, v{L}, 2, 2")
    e(f"v_bfe_u32 v{T1}, v{L}, 4, 1"); e(f"v_lshlrev_b32 v{T1}, 5, v{T1}")
    e(f"v_and_b32 v{T2}, 3, v{L}"); e(f"v_lshl_add_u32 v{T4}, v{T2}, 3, v{T1}")
    e(f"v_and_b32 v{T6}, 1, v{L}"); e(f"v_lshlrev_b32 v{T6}, 4, v{T6}"); e(f"v_add_u32 v{T1}, v{T1}, v{T6}")
    e(f"v_bfe_u32 v{T6}, v{L}, 1, 1"); e(f"v_lshl_add_u32 v{T1}, v{T6}, 3, v{T1}")
    e(f"v_lshl_add_u32 v{T6}, v{T3}, 3, v{T0}"); e(f"v_lshl_add_u32 v{T6}, v{T6}, 9, v{T1}"); e(f"v_add_u32 v{T6}, {WWIN}, v{T6}")
    for j in range(4):
        e(f"v_xor_b32 v{T2}, {j}, v{T0}"); e(f"v_lshl_add_u32 v{aW[j]}, v{T2}, 6, v{T6}")
    e(f"v_lshl_add_u32 v{T7}, v{T3}, 2, v{T0}")
    e(f"v_lshl_add_u32 v{T6}, v{T7}, 9, v{T4}"); e(f"v_add_u32 v{T6}, {VWIN}, v{T6}")
    for j in range(4):
        e(f"v_xor_b32 v{T2}, {j}, v{T0}"); e(f"v_lshl_add_u32 v{aV[j]}, v{T2}, 6, v{T6}")
    e(f"v_lshl_add_u32 v{T6}, v{T7}, 7, v{T1}"); e(f"v_lshrrev_b32 v{T0}, 1, v{T0}")
    for j in range(2):
        e(f"v_xor_b32 v{T2}, {j}, v{T0}"); e(f"v_lshl_add_u32 v{aO[0][j]}, v{T2}, 6, v{T6}")
        for wi in (1, 2): e(f"v_add_u32 v{aO[wi][j]}, {OWIN[wi]}, v{aO[0][j]}")
    e(f"v_lshlrev_b32 v{T0}, 9, v{T5}"); e(f"v_and_b32 v{T1}, 15, v{L}"); e(f"v_xor_b32 v{T1}, v{T1}, v{T3}")
    for j in range(8):
        e(f"v_xor_b32 v{T2}, {2*j}, v{T1}"); e(f"v_lshl_add_u32 v{aK[j]}, v{T2}, 4, v{T0}")
    e(f"v_lshrrev_b32 v{T0}, 3, v{T5}"); e(f"s_lshl_b32 s3, s{sW}, 2"); e(f"v_add_u32 v{T0}, s3, v{T0}")
    e(f"v_mul_u32_u24 v{T0}, {7*SL}, v{T0}")
    e(f"v_lshl_add_u32 v{T0}, v{T3}, 7, v{T0}"); e(f"v_and_b32 v{T1}, 7, v{L}"); e(f"v_lshl_add_u32 v{oP}, v{T1}, 4, v{T0}")

def dump(E, regs_, base_idx):
    e = E
    e("s_waitcnt lgkmcnt(0)"); e("s_nop 15")
    e(f"s_add_u32 s{SRD_D}, s82, 0x4000000"); e(f"s_addc_u32 s{SRD_D+1}, s83, 0"); e(f"s_mov_b32 s{SRD_D+2}, 0x4000000"); e(f"s_mov_b32 s{SRD_D+3}, 0x20000")
    e(f"s_lshl_b32 s3, s2, 2"); e(f"s_add_u32 s3, s3, s{sW}"); e("s_lshl_b32 s3, s3, 16")
    e(f"v_lshlrev_b32 v63, 2, v{vLANE}")
    for k, r in enumerate(regs_):
        e(f"s_add_u32 s62, s3, {(base_idx + k)*256}")
        e(f"buffer_store_dword {r}, v63, {srd(SRD_D)}, s62 offen", "dbg")
    e("s_waitcnt vmcnt(0)")

def gen_k1(cfg):
    E = Emitter(); e = E
    tiles = plan(cfg)
    prologue_scalar(E, cfg)
    addr_dma_xw(E)
    prologue_srd(E)
    for t in tiles:
        if t.issue_step == -2:
            for g in dma_items(t, cfg):
                for txt, tag in g: e(txt, tag)
    addr_read(E)
    VQ = valu_items(cfg); vi = 0
    def emit_item(it):
        for l in it[0]:
            if l.endswith(":"): E.label(l[:-1])
            else: e(l, "st" if l.startswith("buffer_store") else None)
    stamps = cfg.get("stamps", False)
    nst = 0
    for m in range(-1, 60):
        rd = [t for t in tiles if t.read_step == m]
        iss = [t for t in tiles if t.issue_step == m]
        if rd:
            n = E.vm_after({t.tag() for t in rd})
            e(f"s_waitcnt vmcnt({min(n,63)}) lgkmcnt(0)")
            e("s_barrier")
        else:
            e("s_waitcnt lgkmcnt(0)")
        if stamps and m in stamps:
            e(f"s_memrealtime s[{84+2*nst}:{85+2*nst}]"); nst += 1
        reads = sum((read_items(t) for t in rd), [])
        dm = sum((dma_items(t, cfg) for t in iss), [])
        if m < 0:
            for g in dm:
                for txt, tag in g: e(txt, tag)
            for r in reads: e(r)
            continue
        M = mfmas(m)
        rpg = cfg.get("rpg", 3) if len(reads) > 16 else cfg.get("rpg1", 2)
        dgap = {}
        if dm:
            span = cfg.get("dspan", 14)
            for k, g in enumerate(dm): dgap.setdefault(1 + (k * span) // len(dm), []).append(g)
        for i in range(16):
            gi = 16*m + i
            while vi < len(VQ) and VQ[vi][2] <= gi:
                assert VQ[vi][1] - 3 < gi, (VQ[vi], gi)
                emit_item(VQ[vi]); vi += 1
            e(M[i])
            budget = cfg.get("budget", 24)
            for _ in range(rpg):
                if reads: e(reads.pop(0)); budget -= 4
            for g in dgap.get(i, []):
                for txt, tag in g: e(txt, tag); budget -= cost(txt)
            while vi < len(VQ) and VQ[vi][1] <= gi and budget >= sum(cost(l) for l in VQ[vi][0] if not l.endswith(":")):
                budget -= sum(cost(l) for l in VQ[vi][0] if not l.endswith(":"))
                emit_item(VQ[vi]); vi += 1
        assert not reads
        if 16 <= m <= 44 and m % 2 == 0:
            j = (m - 14) // 2
            e(f"s_cmp_lg_u32 s{sFL}, 0"); e(f"s_cbranch_scc1 L_r2_{j}"); E.label(f"L_b2_{j}")
        D = cfg.get("dump", {})
        if m in D:
            dump(E, *D[m])
    while vi < len(VQ):
        emit_item(VQ[vi]); vi += 1
    if stamps:
        e(f"s_memrealtime s[{84+2*nst}:{85+2*nst}]"); nst += 1
        e("s_waitcnt vmcnt(0)")
        e(f"s_memrealtime s[{84+2*nst}:{85+2*nst}]"); nst += 1
        e("s_waitcnt lgkmcnt(0)")
        e(f"s_add_u32 s{SRD_D}, s82, 0x4000000"); e(f"s_addc_u32 s{SRD_D+1}, s83, 0"); e(f"s_mov_b32 s{SRD_D+2}, 0x4000000"); e(f"s_mov_b32 s{SRD_D+3}, 0x20000")
        e(f"s_lshl_b32 s3, s2, 2"); e(f"s_add_u32 s3, s3, s{sW}"); e("s_lshl_b32 s3, s3, 7")
        e(f"v_mov_b32 v63, 0")
        for k in range(nst):
            e(f"v_mov_b32 v{T0}, s{84+2*k}")
            e(f"buffer_store_dword v{T0}, v63, {srd(SRD_D)}, s3 offen offset:{4*k}")
    E.label("L_end"); e("s_endpgm")
    R = E.raw
    for j in range(1, 16):
        R(f"L_r1_{j}:"); R(f"s_call_b64 s[{sRET}:{sRET+1}], L_rare1"); R(f"s_branch L_b1_{j}")
        R(f"L_r2_{j}:"); R(f"s_call_b64 s[{sRET}:{sRET+1}], L_rare2"); R(f"s_branch L_b2_{j}")
    R("L_rare1:")
    for l in [f"v_mov_b32 v{vT2}, v{vT}", "s_nop 1", f"v_permlane32_swap_b32 v{vT}, v{vT2}", "s_nop 1", f"v_max_f32 v{vT}, v{vT}, v{vT2}",
              f"v_mul_f32 v{vT}, s{sC}, v{vT}", f"v_max_f32 v{vT}, v{vT}, v{vM}", f"v_sub_f32 v{vF}, v{vM}, v{vT}", f"v_exp_f32 v{vF}, v{vF}",
              f"v_mov_b32 v{vM}, v{vT}", f"v_mul_f32 v{vTHR}, s{sIC}, v{vT}", f"v_add_f32 v{vTHR}, s{sTC}, v{vTHR}",
              f"v_mul_f32 v{vL0}, v{vL0}, v{vF}", f"v_mul_f32 v{vL1}, v{vL1}, v{vF}", f"s_mov_b32 s{sFL}, 1", "s_nop 1",
              f"s_setpc_b64 s[{sRET}:{sRET+1}]"]: R(l)
    R("L_rare2:")
    R("s_nop 15")
    for r in range(128): R(f"v_mul_f32 v{vACC+r}, v{vACC+r}, v{vF}")
    R(f"s_mov_b32 s{sFL}, 0"); R("s_nop 1"); R(f"s_setpc_b64 s[{sRET}:{sRET+1}]")
    return E

def gen_k2(cfg):
    E = Emitter(); e = E
    e("s_cmp_ge_u32 s2, 256"); e("s_cbranch_scc1 L2_end")
    e("s_load_dwordx2 s[4:5], s[0:1], 80"); e("s_load_dwordx2 s[6:7], s[0:1], 96")
    e("v_lshrrev_b32 v1, 6, v0"); e("v_and_b32 v2, 63, v0"); e("v_readfirstlane_b32 s20, v1")
    e(f"s_mul_i32 s3, s2, 7"); e("s_add_u32 s3, s3, s20"); e("s_lshl_b32 s3, s3, 14")
    e("v_lshlrev_b32 v3, 4, v2")
    e("s_waitcnt lgkmcnt(0)")
    e("s_add_u32 s8, s6, s3"); e("s_addc_u32 s9, s7, 0"); e(f"s_mov_b32 s10, {SL}"); e("s_mov_b32 s11, 0x20000")
    e("s_mov_b32 s12, s4"); e("s_mov_b32 s13, s5"); e(f"s_mov_b32 s14, {8*128*896*2}"); e("s_mov_b32 s15, 0x20000")
    for h in range(16):
        if h % 4 == 0: e(f"s_mov_b32 s21, {h*1024}")
        off = f" offset:{(h%4)*1024}" if h % 4 else ""
        e(f"buffer_load_dwordx4 {vr(16+4*h,4)}, v3, s[8:11], s21 offen{off}")
    e("s_lshr_b32 s22, s2, 4"); e("s_and_b32 s23, s2, 15")
    e("s_and_b32 s24, s22, 7"); e("s_lshr_b32 s25, s22, 3")
    e("s_lshl_b32 s24, s24, 7"); e("s_lshl_b32 s23, s23, 3"); e("s_add_u32 s24, s24, s23")
    e("s_mul_i32 s24, s24, 1792"); e("s_mul_i32 s25, s25, 896"); e("s_add_u32 s24, s24, s25"); e("s_lshl_b32 s23, s20, 7"); e("s_add_u32 s24, s24, s23")
    e("v_and_b32 v4, 7, v2"); e("v_mul_u32_u24 v4, 1792, v4"); e("v_lshrrev_b32 v5, 3, v2"); e("v_lshl_add_u32 v4, v5, 4, v4")
    for h in range(16):
        e(f"s_waitcnt vmcnt({15-h})")
        for k in range(4):
            src = 16 + 4*h + k
            if h == 0:
                e(f"v_lshlrev_b32 v{8+2*k}, 16, v{src}"); e(f"v_and_b32 v{9+2*k}, 0xffff0000, v{src}")
            else:
                e(f"v_lshlrev_b32 v6, 16, v{src}"); e(f"v_and_b32 v7, 0xffff0000, v{src}")
                e(f"v_add_f32 v{8+2*k}, v{8+2*k}, v6"); e(f"v_add_f32 v{9+2*k}, v{9+2*k}, v7")
    for k in range(4): e(f"v_cvt_pk_bf16_f32 v{16+k}, v{8+2*k}, v{9+2*k}")
    e("buffer_store_dwordx4 v[16:19], v4, s[12:15], s24 offen")
    E.label("L2_end"); e("s_endpgm")
    return E

def kd(name, vgpr, sgpr, accum):
    return f""".p2align 6
.amdhsa_kernel {name}
  .amdhsa_next_free_vgpr {vgpr}
  .amdhsa_next_free_sgpr {sgpr}
  .amdhsa_accum_offset {accum}
  .amdhsa_group_segment_fixed_size 0
  .amdhsa_kernarg_size 104
  .amdhsa_user_sgpr_count 2
  .amdhsa_user_sgpr_kernarg_segment_ptr 1
  .amdhsa_system_sgpr_workgroup_id_x 1
  .amdhsa_float_denorm_mode_32 3
.end_amdhsa_kernel
"""
def build(cfg):
    k1 = gen_k1(cfg); k2 = gen_k2(cfg)
    s = f"; @launch kernel={KN} grid=(256,1,1) block=(256,1,1) lds=163840\n"
    s += f"; @launch kernel=reduce_kernel grid=(256,1,1) block=(448,1,1) lds=0\n"
    s += '.amdgcn_target "amdgcn-amd-amdhsa--gfx950"\n.text\n'
    s += f".globl {KN}\n.p2align 8\n.type {KN},@function\n{KN}:\n" + k1.text()
    s += f".globl reduce_kernel\n.p2align 8\n.type reduce_kernel,@function\nreduce_kernel:\n" + k2.text()
    s += '.section .rodata,"a"\n' + kd(KN, 512, 102, 256) + kd("reduce_kernel", 80, 32, 80)
    return s, k1
if __name__ == "__main__":
    cfg = {}
    s, k1 = build(cfg)
    open(sys.argv[1] if len(sys.argv) > 1 else "k.s", "w").write(s)
    print("nops inserted", k1.nops, "lines", len(k1.lines))
    for t in plan(cfg): print(t.typ + str(t.idx), "slot", t.slot, "issue", t.issue_step, "read", t.read_step, end=" | ")
```

```python
import sys, json
import importlib
import gen
args = sys.argv[1:]
for i in range(0, len(args), 2):
    cfg = eval(args[i+1])
    s, k1 = gen.build(cfg)
    open(args[i], "w").write(s)
    print(args[i], "nops", k1.nops, "lines", len(k1.lines))
```

```python
import sys, struct, math
from emit import Emitter
BASE = "concat_heads__mha_block_cached__mha_block_cached__near_ridge"
KN = BASE + "_kernel"
def f2u(x): return struct.unpack("<I", struct.pack("<f", x))[0]
SL = 16384
SRD_X, SRD_K, SRD_V, SRD_W, SRD_O, SRD_P, SRD_D = 4, 8, 12, 16, 20, 24, 28
sW, sWB, sB, sH, sBR, sG, sHL = 32, 33, 34, 35, 36, 37, 38
sXo, sWo, sKo, sVo, sOo, sPo, sT = 40, 41, 42, 43, 44, 45, 46
sC, sTC, sIC, sFL = 48, 49, 50, 51
sRET = 52
aK = list(range(1, 9)); aV = list(range(9, 13)); aW = list(range(13, 17)); aX = list(range(17, 21))
aO = [[21, 22], [23, 24], [25, 26]]
oK = list(range(27, 31)); oV = [31, 32]; oW = list(range(33, 37)); oX = list(range(37, 41)); oO = list(range(41, 45)); oP = 45
vM, vTHR, vL0, vL1, vT, vT2, vF, vRL = 46, 47, 48, 49, 50, 51, 52, 53
T0, T1, T2, T3, T4, T5, T6, T7 = 54, 55, 56, 57, 58, 59, 60, 61
vLANE = 62
vS = [64, 80]; vTMP = 96; vP = [112, 120]; vOF = 64; vACC = 128; vST = 192
aFR = [0, 64]; aQ = 128; aXF = [192, 208]
KWIN, VWIN, WWIN, XWIN = 0, 3*SL, 6*SL, 4*SL
OWIN = [0, 4*SL, 8*SL]

def srd(n): return f"s[{n}:{n+3}]"
def vr(b, n): return f"v[{b}:{b+n-1}]"
def ar(b, n): return f"a[{b}:{b+n-1}]"

class Tile:
    def __init__(self, typ, idx, read_step):
        self.typ = typ; self.idx = idx; self.read_step = read_step; self.slot = None; self.issue_step = None
    def tag(self): return (self.typ, self.idx)

def plan(cfg):
    W = [Tile("W", m, m - 1) for m in range(14)]
    X = [Tile("X", i, 2*i - 1) for i in range(7)]
    qk = lambda j: 14 if j == 0 else 13 + 2*j
    pv = lambda j: 16 + 2*j if j < 15 else 45
    K = [Tile("K", j, qk(j) - 1) for j in range(16)]
    V = [Tile("V", j, pv(j) - 1) for j in range(16)]
    O = [Tile("O", m, 46 + m - 1) for m in range(14)]
    for t in W: t.slot = 6 + t.idx % 4
    for t in X: t.slot = 4 + t.idx % 2
    for t in K: t.slot = t.idx % 3
    for t in V: t.slot = 3 + t.idx % 3
    oslots = cfg.get("oslots", [6, 7, 8, 9, 1, 2, 0, 4, 5, 3, 6, 7, 8, 9])
    for t in O: t.slot = oslots[t.idx]
    allt = W + X + K + V + O
    for t in allt:
        prev = [p.read_step for p in allt if p.slot == t.slot and p.read_step < t.read_step]
        t.free = (max(prev) + 1) if prev else -2
    L = cfg.get("lead", 3); LQ = cfg.get("leadq", 3); LO = cfg.get("leado", 4)
    early = cfg.get("early", {})
    for t in allt:
        lead = {"W": LQ, "X": LQ, "K": L, "V": L, "O": LO}[t.typ]
        t.issue_step = max(t.free, t.read_step - lead, -2)
        if t.tag() in early: t.issue_step = max(t.free, early[t.tag()])
        assert t.issue_step < t.read_step
    order = {"X": 0, "W": 1, "K": 2, "V": 2, "O": 3}
    allt.sort(key=lambda t: (t.issue_step, t.read_step, order[t.typ]))
    for ty in "WXKVO":
        ids = [t.idx for t in allt if t.typ == ty]
        assert ids == sorted(ids), (ty, ids)
    return allt

def dma_items(t, cfg):
    pol = {"W": cfg.get("polw", ""), "X": cfg.get("polw", ""), "K": cfg.get("polkv", "nt"), "V": cfg.get("polkv", "nt"), "O": cfg.get("polo", "")}[t.typ]
    pol = (" " + pol) if pol else ""
    pre = [f"s_add_u32 m0, s{sWB}, {t.slot*SL}"]
    post = []
    if t.typ == "X":
        so, sr, vo = sXo, SRD_X, oX
        post = [f"s_add_u32 s{sXo}, s{sXo}, 128", f"s_cmp_eq_u32 s{sXo}, 896", f"s_cselect_b32 s{sXo}, 0, s{sXo}"]
    elif t.typ == "W":
        so, sr, vo = sWo, SRD_W, oW
        post = [f"s_add_u32 s{sWo}, s{sWo}, {32*8192}", f"s_cmp_eq_u32 s{sWo}, {448*8192}", f"s_cselect_b32 s{sWo}, 0, s{sWo}"]
    elif t.typ == "K":
        so, sr, vo = sKo, SRD_K, oK
        post = [f"s_add_u32 s{sKo}, s{sKo}, {SL}", f"s_and_b32 s{sKo}, s{sKo}, 0x3ffff"]
    elif t.typ == "V":
        so, sr, vo = sVo, SRD_V, [oV[0], oV[1], oV[0], oV[1]]
        post = [f"s_add_u32 s{sVo}, s{sVo}, {SL}", f"s_and_b32 s{sVo}, s{sVo}, 0x3ffff"]
    else:
        so, sr, vo = sOo, SRD_O, oO
        if t.idx % 2 == 0:
            post = [f"s_add_u32 s{sOo}, s{sOo}, {128*896}"]
        else:
            post = [f"s_sub_u32 s{sOo}, s{sOo}, {128*896 - 128}", f"s_cmp_eq_u32 s{sOo}, 896", f"s_cselect_b32 s{sOo}, 0, s{sOo}"]
    groups = []
    for i in range(4):
        g = []
        if i == 0: g += [(p, None) for p in pre]
        off = f" offset:{1024*i}" if i else ""
        g.append((f"buffer_load_dwordx4 v{vo[i]}, {srd(sr)}, s{so} offen{off}{pol} lds", t.tag()))
        if i == 3: g += [(p, None) for p in post]
        groups.append(g)
    return groups

def read_items(t):
    r = []
    fs = aFR[(t.read_step + 1) & 1]
    sb = t.slot * SL
    if t.typ == "X":
        xb = aXF[t.idx & 1]
        for j in range(4): r.append(f"ds_read_b128 {ar(xb+4*j,4)}, v{aX[j]} offset:{sb - XWIN}")
    elif t.typ == "K":
        for ks in range(16): r.append(f"ds_read_b128 {ar(fs+4*ks,4)}, v{aK[ks&7]} offset:{sb - KWIN + 256*(ks>>3)}")
    elif t.typ in "WV":
        a, win = (aW, WWIN) if t.typ == "W" else (aV, VWIN)
        for s in range(2):
            for dt in range(8):
                for tt in range(2):
                    row = 16*s + (4*tt if t.typ == "W" else 8*tt)
                    r.append(f"ds_read_b64_tr_b16 {ar(fs+4*(8*s+dt)+2*tt,2)}, v{a[dt&3]} offset:{sb - win + row*512 + 256*(dt>>2)}")
    else:
        wi = t.slot // 4
        for ks in range(8):
            for nt in range(2):
                for tt in range(2):
                    r.append(f"ds_read_b64_tr_b16 {ar(fs+4*(2*ks+nt)+2*tt,2)}, v{aO[wi][nt]} offset:{sb - OWIN[wi] + (16*ks+8*tt)*128}")
    for x in r:
        off = int(x.split("offset:")[1]); assert 0 <= off < 65536, x
    return r

MF = "v_mfma_f32_32x32x16_bf16"
def mfmas(m):
    fs = aFR[m & 1]
    out = []
    if m < 14:
        order = [(s, dt) for s in range(2) for dt in range(8)] if m < 13 else [(s, dt) for dt in range(8) for s in range(2)]
        xb = aXF[(m >> 1) & 1] + 8 * (m & 1)
        for s, dt in order:
            d = vr(vACC + 16*dt, 16)
            c = "0" if (m == 0 and s == 0) else d
            out.append(f"{MF} {d}, {ar(fs+4*(8*s+dt),4)}, {ar(xb+4*s,4)}, {c}")
    elif m < 46:
        if m == 14 or (m % 2 == 1 and m < 45):
            j = 0 if m == 14 else (m - 13) // 2
            d = vr(vS[j & 1], 16)
            for ks in range(16):
                out.append(f"{MF} {d}, {ar(fs+4*ks,4)}, {ar(aQ+4*ks,4)}, {'0' if ks == 0 else d}")
        else:
            j = 15 if m == 45 else (m - 16) // 2
            order = [(s, dt) for s in range(2) for dt in range(8)] if j < 15 else [(s, dt) for dt in range(8) for s in range(2)]
            for s, dt in order:
                d = vr(vACC + 16*dt, 16)
                c = "0" if (j == 0 and s == 0) else d
                out.append(f"{MF} {d}, {ar(fs+4*(8*s+dt),4)}, {vr(vP[j&1]+4*s,4)}, {c}")
    else:
        c_, kh = (m - 46) // 2, (m - 46) % 2
        for ks in range(8):
            for nt in range(2):
                d = vr(vACC + 32*(c_ & 1) + 16*nt, 16)
                c = "0" if (kh == 0 and ks == 0) else d
                out.append(f"{MF} {d}, {ar(fs+4*(2*ks+nt),4)}, {vr(vOF+4*(8*kh+ks),4)}, {c}")
    return out

def cost(t):
    if t.startswith(("v_exp", "v_rcp")): return 8
    if t.startswith("buffer_"): return 8
    return 4

def valu_items(cfg):
    Q = []
    G = lambda m, i: 16*m + i
    for dt in range(8):
        for s in range(2):
            for k in range(4):
                tmp = vTMP + (8*dt + 4*s + k) % 16
                a = vACC + 16*dt + 8*s + 2*k
                Q.append(([f"v_cvt_pk_bf16_f32 v{tmp}, v{a}, v{a+1}"], G(13, 2*dt+1) + 3, G(14, 2*dt+s)))
            for k in range(4):
                tmp = vTMP + (8*dt + 4*s + k) % 16
                Q.append(([f"v_accvgpr_write_b32 a{aQ+4*(2*dt+s)+k}, v{tmp}"], G(13, 2*dt+1) + 3, G(14, 2*dt+s)))
    for j in range(16):
        qs = 14 if j == 0 else 13 + 2*j
        ps = 16 + 2*j if j < 15 else 45
        rdy = G(qs, 15) + 3
        S = vS[j & 1]; P = vP[j & 1]
        nb_chk = G(qs + 1, 15)
        Q.append(([f"v_max3_f32 v{vT}, v{S}, v{S+1}, v{S+2}"], rdy, nb_chk))
        for k in range(6): Q.append(([f"v_max3_f32 v{vT}, v{vT}, v{S+3+2*k}, v{S+4+2*k}"], rdy, nb_chk))
        Q.append(([f"v_max_f32 v{vT}, v{vT}, v{S+15}"], rdy, nb_chk))
        if j == 0:
            Q.append(([f"v_mov_b32 v{vT2}, v{vT}", f"v_permlane32_swap_b32 v{vT}, v{vT2}", f"v_max_f32 v{vT}, v{vT}, v{vT2}",
                       f"v_mul_f32 v{vM}, s{sC}, v{vT}", f"v_add_f32 v{vTHR}, s{sTC}, v{vT}"], rdy, nb_chk))
        else:
            Q.append(([f"v_cmp_gt_f32 vcc, v{vT}, v{vTHR}", f"s_cbranch_vccnz L_r1_{j}", f"L_b1_{j}:"], rdy, nb_chk))
        for h in range(8):
            nb = G(ps, 0) if (h < 4 or j == 15) else G(ps, 8)
            a, b = S + 2*h, S + 2*h + 1
            Q.append(([f"v_fma_f32 v{a}, v{a}, s{sC}, -v{vM}"], rdy, nb))
            Q.append(([f"v_fma_f32 v{b}, v{b}, s{sC}, -v{vM}"], rdy, nb))
            Q.append(([f"v_exp_f32 v{a}, v{a}"], rdy, nb))
            Q.append(([f"v_exp_f32 v{b}, v{b}"], rdy, nb))
            if j == 0 and h == 0:
                Q.append(([f"v_mov_b32 v{vL0}, v{a}"], rdy, nb)); Q.append(([f"v_mov_b32 v{vL1}, v{b}"], rdy, nb))
            else:
                Q.append(([f"v_add_f32 v{vL0}, v{vL0}, v{a}"], rdy, nb)); Q.append(([f"v_add_f32 v{vL1}, v{vL1}, v{b}"], rdy, nb))
            Q.append(([f"v_cvt_pk_bf16_f32 v{P+h}, v{a}, v{b}"], rdy, nb))
    Q.append(([f"v_add_f32 v{vL0}, v{vL0}, v{vL1}"], G(45, 0), G(46, 0)))
    Q.append(([f"v_mov_b32 v{vL1}, v{vL0}", f"v_permlane32_swap_b32 v{vL0}, v{vL1}", f"v_add_f32 v{vL0}, v{vL0}, v{vL1}", f"v_rcp_f32 v{vRL}, v{vL0}"], G(45, 0), G(46, 0)))
    for dt in range(8):
        for s in range(2):
            f = 2*dt + s
            nb = G(46, 0) if dt < 2 else (G(46, 2*f) if f < 8 else G(47, 2*(f-8)))
            for k in range(4):
                a = vACC + 16*dt + 8*s + 2*k
                Q.append(([f"v_cvt_pk_bf16_f32 v{vOF+4*f+k}, v{a}, v{a+1}"], G(45, 2*dt+1) + 3, nb))
    st = cfg.get("polst", "sc1"); st = (" " + st) if st else ""
    for c in range(7):
        rdy = G(47 + 2*c, 15) + 3; nb = G(50 + 2*c, 0)
        for nt in range(2):
            for s in range(2):
                a = vACC + 32*(c & 1) + 16*nt + 8*s
                sg = vST + 16*(c & 3) + 4*(2*nt + s)
                for k in range(8): Q.append(([f"v_mul_f32 v{a+k}, v{a+k}, v{vRL}"], rdy, nb))
                for k in range(4): Q.append(([f"v_cvt_pk_bf16_f32 v{sg+k}, v{a+2*k}, v{a+2*k+1}"], rdy, nb))
                off = f" offset:{256*(2*nt+s)}" if (nt or s) else ""
                l = [f"buffer_store_dwordx4 {vr(sg,4)}, v{oP}, {srd(SRD_P)}, s{sPo} offen{off}{st}"]
                if nt == 1 and s == 1:
                    l += [f"s_add_u32 s{sPo}, s{sPo}, {SL}", f"s_cmp_eq_u32 s{sPo}, {7*SL}", f"s_cselect_b32 s{sPo}, 0, s{sPo}"]
                Q.append((l, rdy, nb))
    return Q

def prologue_scalar(E, cfg):
    e = E
    e("s_cmp_ge_u32 s2, 256"); e("s_cbranch_scc1 L_end")
    e(f"s_lshr_b32 s{sBR}, s2, 2"); e(f"s_and_b32 s{sBR}, s{sBR}, 1")
    e(f"s_mul_i32 s3, s{sBR}, 40"); e("s_add_u32 s60, s0, s3"); e("s_addc_u32 s61, s1, 0")
    e("s_load_dwordx8 s[72:79], s[60:61], 0"); e("s_load_dwordx2 s[80:81], s[60:61], 32"); e("s_load_dwordx2 s[82:83], s[0:1], 96")
    e(f"s_and_b32 s{sH}, s2, 3"); e(f"s_lshr_b32 s{sB}, s2, 3"); e(f"s_and_b32 s{sB}, s{sB}, 7"); e(f"s_lshr_b32 s{sHL}, s2, 6")
    e(f"s_lshl_b32 s{sH}, s{sH}, 2"); e(f"s_add_u32 s{sH}, s{sH}, s{sHL}")
    e(f"s_lshl_b32 s{sG}, s{sBR}, 3"); e(f"s_add_u32 s{sG}, s{sG}, s{sB}")
    e(f"v_lshrrev_b32 v{T0}, 6, v0"); e(f"v_and_b32 v{vLANE}, 63, v0"); e(f"v_readfirstlane_b32 s{sW}, v{T0}")
    if cfg.get("rotq", True):
        e(f"s_lshl_b32 s3, s{sHL}, 1"); e(f"s_add_u32 s3, s3, s{sB}")
        e("s_cmp_ge_u32 s3, 7"); e("s_cselect_b32 s62, 7, 0"); e("s_sub_u32 s3, s3, s62")
    else:
        e("s_mov_b32 s3, 0")
    e(f"s_lshl_b32 s{sXo}, s3, 7"); e(f"s_lshl_b32 s{sWo}, s3, 19")
    if cfg.get("rotkv", True):
        e(f"s_lshr_b32 s3, s2, 3"); e(f"s_add_u32 s3, s3, s2"); e("s_and_b32 s3, s3, 15")
    else:
        e("s_mov_b32 s3, 0")
    e(f"s_lshl_b32 s{sKo}, s3, 14"); e(f"s_mov_b32 s{sVo}, s{sKo}")
    if cfg.get("roto", True):
        e(f"s_cmp_eq_u32 s{sB}, 7"); e(f"s_cselect_b32 s3, 0, s{sB}")
    else:
        e("s_mov_b32 s3, 0")
    e(f"s_lshl_b32 s{sOo}, s3, 7"); e(f"s_lshl_b32 s{sPo}, s3, 14")
    c = math.log2(math.e) / 16.0
    T = cfg.get("T", 8.0)
    e(f"s_mov_b32 s{sC}, {hex(f2u(c))}"); e(f"s_mov_b32 s{sTC}, {hex(f2u(T/c))}"); e(f"s_mov_b32 s{sIC}, {hex(f2u(1.0/c))}"); e(f"s_mov_b32 s{sFL}, 0")
    e(f"s_lshl_b32 s{sWB}, s{sW}, 12")

def prologue_srd(E):
    e = E
    e("s_waitcnt lgkmcnt(0)")
    def mk(d, p, offexpr_reg, size):
        e(f"s_add_u32 s{d}, s{p}, {offexpr_reg}"); e(f"s_addc_u32 s{d+1}, s{p+1}, 0"); e(f"s_mov_b32 s{d+2}, {size}"); e(f"s_mov_b32 s{d+3}, 0x20000")
    e(f"s_mul_i32 s3, s{sB}, 114688"); mk(SRD_X, 72, "s3", 114688)
    e(f"s_lshl_b32 s3, s{sH}, 9"); mk(SRD_W, 78, "s3", 447*8192 + 512)
    e(f"s_lshl_b32 s3, s{sB}, 4"); e(f"s_add_u32 s3, s3, s{sH}"); e("s_lshl_b32 s3, s3, 18")
    mk(SRD_K, 74, "s3", 262144); mk(SRD_V, 76, "s3", 262144)
    e(f"s_mul_i32 s3, s{sH}, {256*896}"); mk(SRD_O, 80, "s3", 256*896)
    e(f"s_mul_i32 s3, s{sG}, {16*7*SL}"); e(f"s_lshl_b32 s62, s{sH}, 10"); e("s_add_u32 s3, s3, s62"); mk(SRD_P, 82, "s3", 16*7*SL - 15*1024)

def addr_dma_xw(E):
    e = E; L = vLANE
    e(f"v_lshrrev_b32 v{T0}, 3, v{L}"); e(f"s_lshl_b32 s3, s{sW}, 5"); e(f"v_add_u32 v{T0}, s3, v{T0}")
    e(f"v_mul_u32_u24 v{T0}, 896, v{T0}")
    e(f"v_and_b32 v{T1}, 7, v{L}"); e(f"v_lshrrev_b32 v{T2}, 4, v{L}"); e(f"v_xor_b32 v{T2}, v{T1}, v{T2}")
    e(f"v_lshl_add_u32 v{oX[0]}, v{T2}, 4, v{T0}")
    e(f"v_xor_b32 v{T2}, 4, v{T2}"); e(f"v_lshl_add_u32 v{oX[1]}, v{T2}, 4, v{T0}"); e(f"v_add_u32 v{oX[1]}, 6144, v{oX[1]}")
    e(f"v_add_u32 v{oX[2]}, {2*6144}, v{oX[0]}"); e(f"v_add_u32 v{oX[3]}, {2*6144}, v{oX[1]}")
    e(f"v_lshrrev_b32 v{T3}, 5, v{L}")
    e(f"s_lshl_b32 s3, s{sW}, 3"); e(f"v_add_u32 v{T4}, s3, v{T3}")
    e(f"v_and_b32 v{T5}, 31, v{L}"); e(f"v_lshlrev_b32 v{T6}, 2, v{T3}"); e(f"v_xor_b32 v{T6}, v{T5}, v{T6}")
    e(f"v_lshlrev_b32 v{T6}, 4, v{T6}")
    e(f"v_xor_b32 v{T7}, 128, v{T6}")
    e(f"v_lshl_add_u32 v{oW[0]}, v{T4}, 13, v{T6}"); e(f"v_lshl_add_u32 v{oW[1]}, v{T4}, 13, v{T7}"); e(f"v_add_u32 v{oW[1]}, 15360, v{oW[1]}")
    e(f"v_add_u32 v{oW[2]}, {2*15360}, v{oW[0]}"); e(f"v_add_u32 v{oW[3]}, {2*15360}, v{oW[1]}")
    e(f"v_lshl_add_u32 v{oV[0]}, v{T4}, 9, v{T6}"); e(f"v_lshl_add_u32 v{oV[1]}, v{T4}, 9, v{T7}")
    for i in range(4):
        e(f"v_add_u32 v{T6}, {2*i}, v{T4}"); e(f"v_and_b32 v{T6}, 15, v{T6}"); e(f"v_xor_b32 v{T6}, v{T5}, v{T6}"); e(f"v_lshlrev_b32 v{T6}, 4, v{T6}")
        e(f"v_lshl_add_u32 v{oK[i]}, v{T4}, 9, v{T6}")
    e(f"v_lshrrev_b32 v{T2}, 2, v{L}"); e(f"v_and_b32 v{T2}, 4, v{T2}"); e(f"v_xor_b32 v{T2}, v{T1}, v{T2}")
    e(f"v_lshl_add_u32 v{oO[0]}, v{T2}, 4, v{T0}")
    for i in range(1, 4): e(f"v_add_u32 v{oO[i]}, {6144*i}, v{oO[0]}")

def addr_read(E):
    e = E; L = vLANE
    e(f"v_lshrrev_b32 v{T3}, 5, v{L}")
    e(f"v_and_b32 v{T5}, 31, v{L}")
    e(f"s_lshl_b32 s3, s{sW}, 12"); e(f"s_add_u32 s3, s3, {XWIN}")
    e(f"v_lshlrev_b32 v{T0}, 7, v{T5}"); e(f"v_add_u32 v{T0}, s3, v{T0}")
    e(f"v_bfe_u32 v{T1}, v{L}, 1, 3"); e(f"v_xor_b32 v{T1}, v{T1}, v{T3}")
    for j in range(4):
        e(f"v_xor_b32 v{T2}, {2*j}, v{T1}"); e(f"v_lshl_add_u32 v{aX[j]}, v{T2}, 4, v{T0}")
    e(f"v_bfe_u32 v{T0}, v{L}, 2, 2")
    e(f"v_bfe_u32 v{T1}, v{L}, 4, 1"); e(f"v_lshlrev_b32 v{T1}, 5, v{T1}")
    e(f"v_and_b32 v{T2}, 3, v{L}"); e(f"v_lshl_add_u32 v{T4}, v{T2}, 3, v{T1}")
    e(f"v_and_b32 v{T6}, 1, v{L}"); e(f"v_lshlrev_b32 v{T6}, 4, v{T6}"); e(f"v_add_u32 v{T1}, v{T1}, v{T6}")
    e(f"v_bfe_u32 v{T6}, v{L}, 1, 1"); e(f"v_lshl_add_u32 v{T1}, v{T6}, 3, v{T1}")
    e(f"v_lshl_add_u32 v{T6}, v{T3}, 3, v{T0}"); e(f"v_lshl_add_u32 v{T6}, v{T6}, 9, v{T1}"); e(f"v_add_u32 v{T6}, {WWIN}, v{T6}")
    for j in range(4):
        e(f"v_xor_b32 v{T2}, {j}, v{T0}"); e(f"v_lshl_add_u32 v{aW[j]}, v{T2}, 6, v{T6}")
    e(f"v_lshl_add_u32 v{T7}, v{T3}, 2, v{T0}")
    e(f"v_lshl_add_u32 v{T6}, v{T7}, 9, v{T4}"); e(f"v_add_u32 v{T6}, {VWIN}, v{T6}")
    for j in range(4):
        e(f"v_xor_b32 v{T2}, {j}, v{T0}"); e(f"v_lshl_add_u32 v{aV[j]}, v{T2}, 6, v{T6}")
    e(f"v_lshl_add_u32 v{T6}, v{T7}, 7, v{T1}"); e(f"v_lshrrev_b32 v{T0}, 1, v{T0}")
    for j in range(2):
        e(f"v_xor_b32 v{T2}, {j}, v{T0}"); e(f"v_lshl_add_u32 v{aO[0][j]}, v{T2}, 6, v{T6}")
        for wi in (1, 2): e(f"v_add_u32 v{aO[wi][j]}, {OWIN[wi]}, v{aO[0][j]}")
    e(f"v_lshlrev_b32 v{T0}, 9, v{T5}"); e(f"v_and_b32 v{T1}, 15, v{L}"); e(f"v_xor_b32 v{T1}, v{T1}, v{T3}")
    for j in range(8):
        e(f"v_xor_b32 v{T2}, {2*j}, v{T1}"); e(f"v_lshl_add_u32 v{aK[j]}, v{T2}, 4, v{T0}")
    e(f"v_lshrrev_b32 v{T0}, 3, v{T5}"); e(f"s_lshl_b32 s3, s{sW}, 2"); e(f"v_add_u32 v{T0}, s3, v{T0}")
    e(f"v_mul_u32_u24 v{T0}, {7*SL}, v{T0}")
    e(f"v_lshl_add_u32 v{T0}, v{T3}, 7, v{T0}"); e(f"v_and_b32 v{T1}, 7, v{L}"); e(f"v_lshl_add_u32 v{oP}, v{T1}, 4, v{T0}")

def dump(E, regs_, base_idx):
    e = E
    e("s_waitcnt lgkmcnt(0)"); e("s_nop 15")
    e(f"s_add_u32 s{SRD_D}, s82, 0x4000000"); e(f"s_addc_u32 s{SRD_D+1}, s83, 0"); e(f"s_mov_b32 s{SRD_D+2}, 0x4000000"); e(f"s_mov_b32 s{SRD_D+3}, 0x20000")
    e(f"s_lshl_b32 s3, s2, 2"); e(f"s_add_u32 s3, s3, s{sW}"); e("s_lshl_b32 s3, s3, 16")
    e(f"v_lshlrev_b32 v63, 2, v{vLANE}")
    for k, r in enumerate(regs_):
        e(f"s_add_u32 s62, s3, {(base_idx + k)*256}")
        e(f"buffer_store_dword {r}, v63, {srd(SRD_D)}, s62 offen", "dbg")
    e("s_waitcnt vmcnt(0)")

def gen_k1(cfg):
    E = Emitter(); e = E
    tiles = plan(cfg)
    if cfg.get("dbgst"): e("s_memrealtime s[66:67]")
    prologue_scalar(E, cfg)
    addr_dma_xw(E)
    prologue_srd(E)
    for t in tiles:
        if t.issue_step == -2:
            for g in dma_items(t, cfg):
                for txt, tag in g: e(txt, tag)
    addr_read(E)
    VQ = valu_items(cfg); vi = 0
    def emit_item(it):
        for l in it[0]:
            if l.endswith(":"): E.label(l[:-1])
            else: e(l, "st" if l.startswith("buffer_store") else None)
    stamps = cfg.get("stamps", False)
    nst = 0
    for m in range(-1, 60):
        rd = [t for t in tiles if t.read_step == m]
        iss = [t for t in tiles if t.issue_step == m]
        if rd:
            n = E.vm_after({t.tag() for t in rd})
            e(f"s_waitcnt vmcnt({min(n,63)}) lgkmcnt(0)")
            e("s_barrier")
        else:
            e("s_waitcnt lgkmcnt(0)")
        if stamps and m in stamps:
            e(f"s_memrealtime s[{84+2*nst}:{85+2*nst}]"); nst += 1
        reads = sum((read_items(t) for t in rd), [])
        dm = sum((dma_items(t, cfg) for t in iss), [])
        if m < 0:
            for g in dm:
                for txt, tag in g: e(txt, tag)
            for r in reads: e(r)
            continue
        M = mfmas(m)
        rpg = cfg.get("rpg", 3) if len(reads) > 16 else cfg.get("rpg1", 2)
        dgap = {}
        if dm:
            span = cfg.get("dspan", 14)
            for k, g in enumerate(dm): dgap.setdefault(1 + (k * span) // len(dm), []).append(g)
        for i in range(16):
            gi = 16*m + i
            while vi < len(VQ) and VQ[vi][2] <= gi:
                assert VQ[vi][1] - 3 < gi, (VQ[vi], gi)
                emit_item(VQ[vi]); vi += 1
            e(M[i])
            budget = cfg.get("budget", 24)
            for _ in range(rpg):
                if reads: e(reads.pop(0)); budget -= 4
            for g in dgap.get(i, []):
                for txt, tag in g: e(txt, tag); budget -= cost(txt)
            while vi < len(VQ) and VQ[vi][1] <= gi and budget >= sum(cost(l) for l in VQ[vi][0] if not l.endswith(":")):
                budget -= sum(cost(l) for l in VQ[vi][0] if not l.endswith(":"))
                emit_item(VQ[vi]); vi += 1
        assert not reads
        if 16 <= m <= 44 and m % 2 == 0:
            j = (m - 14) // 2
            e(f"s_cmp_lg_u32 s{sFL}, 0"); e(f"s_cbranch_scc1 L_r2_{j}"); E.label(f"L_b2_{j}")
        D = cfg.get("dump", {})
        if m in D:
            dump(E, *D[m])
    while vi < len(VQ):
        emit_item(VQ[vi]); vi += 1
    if stamps:
        e(f"s_memrealtime s[{84+2*nst}:{85+2*nst}]"); nst += 1
        e("s_waitcnt vmcnt(0)")
        e(f"s_memrealtime s[{84+2*nst}:{85+2*nst}]"); nst += 1
        e("s_waitcnt lgkmcnt(0)")
        e(f"s_add_u32 s{SRD_D}, s82, 0x4000000"); e(f"s_addc_u32 s{SRD_D+1}, s83, 0"); e(f"s_mov_b32 s{SRD_D+2}, 0x4000000"); e(f"s_mov_b32 s{SRD_D+3}, 0x20000")
        e(f"s_lshl_b32 s3, s2, 2"); e(f"s_add_u32 s3, s3, s{sW}"); e("s_lshl_b32 s3, s3, 7")
        e(f"v_mov_b32 v63, 0")
        for k in range(nst):
            e(f"v_mov_b32 v{T0}, s{84+2*k}")
            e(f"buffer_store_dword v{T0}, v63, {srd(SRD_D)}, s3 offen offset:{4*k}")
        if cfg.get("dbgst"):
            e("s_load_dwordx2 s[68:69], s[0:1], 88"); e("s_waitcnt lgkmcnt(0) vmcnt(0)")
            e(f"s_mov_b32 s{SRD_D}, s68"); e(f"s_mov_b32 s{SRD_D+1}, s69"); e(f"s_mov_b32 s{SRD_D+2}, 256"); e(f"s_mov_b32 s{SRD_D+3}, 0x20000")
            e(f"v_cmp_eq_u32 vcc, 0, v0"); e("s_and_saveexec_b64 s[70:71], vcc"); e("s_cbranch_execz L_end")
            e("s_not_b32 s66, s66"); e(f"v_mov_b32 v{T0}, s66"); e(f"buffer_atomic_umax v{T0}, v63, {srd(SRD_D)}, 0 offen")
            for k in range(nst):
                e(f"v_mov_b32 v{T1+k%4}, s{84+2*k}")
                e(f"buffer_atomic_umax v{T1+k%4}, v63, {srd(SRD_D)}, 0 offen offset:{4*k+4}")
                e("s_waitcnt vmcnt(0)")
    E.label("L_end"); e("s_endpgm")
    R = E.raw
    for j in range(1, 16):
        R(f"L_r1_{j}:"); R(f"s_call_b64 s[{sRET}:{sRET+1}], L_rare1"); R(f"s_branch L_b1_{j}")
        R(f"L_r2_{j}:"); R(f"s_call_b64 s[{sRET}:{sRET+1}], L_rare2"); R(f"s_branch L_b2_{j}")
    R("L_rare1:")
    for l in [f"v_mov_b32 v{vT2}, v{vT}", "s_nop 1", f"v_permlane32_swap_b32 v{vT}, v{vT2}", "s_nop 1", f"v_max_f32 v{vT}, v{vT}, v{vT2}",
              f"v_mul_f32 v{vT}, s{sC}, v{vT}", f"v_max_f32 v{vT}, v{vT}, v{vM}", f"v_sub_f32 v{vF}, v{vM}, v{vT}", f"v_exp_f32 v{vF}, v{vF}",
              f"v_mov_b32 v{vM}, v{vT}", f"v_mul_f32 v{vTHR}, s{sIC}, v{vT}", f"v_add_f32 v{vTHR}, s{sTC}, v{vTHR}",
              f"v_mul_f32 v{vL0}, v{vL0}, v{vF}", f"v_mul_f32 v{vL1}, v{vL1}, v{vF}", f"s_mov_b32 s{sFL}, 1", "s_nop 1",
              f"s_setpc_b64 s[{sRET}:{sRET+1}]"]: R(l)
    R("L_rare2:")
    R("s_nop 15")
    for r in range(128): R(f"v_mul_f32 v{vACC+r}, v{vACC+r}, v{vF}")
    R(f"s_mov_b32 s{sFL}, 0"); R("s_nop 1"); R(f"s_setpc_b64 s[{sRET}:{sRET+1}]")
    return E

def gen_k2(cfg):
    E = Emitter(); e = E
    e("s_cmp_ge_u32 s2, 256"); e("s_cbranch_scc1 L2_end")
    e("s_load_dwordx2 s[4:5], s[0:1], 80"); e("s_load_dwordx2 s[6:7], s[0:1], 96")
    e("v_lshrrev_b32 v1, 6, v0"); e("v_and_b32 v2, 63, v0"); e("v_readfirstlane_b32 s20, v1")
    e(f"s_mul_i32 s3, s2, 7"); e("s_add_u32 s3, s3, s20"); e("s_lshl_b32 s3, s3, 14")
    e("v_lshlrev_b32 v3, 4, v2")
    e("s_waitcnt lgkmcnt(0)")
    e("s_add_u32 s8, s6, s3"); e("s_addc_u32 s9, s7, 0"); e(f"s_mov_b32 s10, {SL}"); e("s_mov_b32 s11, 0x20000")
    e("s_mov_b32 s12, s4"); e("s_mov_b32 s13, s5"); e(f"s_mov_b32 s14, {8*128*896*2}"); e("s_mov_b32 s15, 0x20000")
    for h in range(16):
        if h % 4 == 0: e(f"s_mov_b32 s21, {h*1024}")
        off = f" offset:{(h%4)*1024}" if h % 4 else ""
        e(f"buffer_load_dwordx4 {vr(16+4*h,4)}, v3, s[8:11], s21 offen{off}")
    e("s_lshr_b32 s22, s2, 4"); e("s_and_b32 s23, s2, 15")
    e("s_and_b32 s24, s22, 7"); e("s_lshr_b32 s25, s22, 3")
    e("s_lshl_b32 s24, s24, 7"); e("s_lshl_b32 s23, s23, 3"); e("s_add_u32 s24, s24, s23")
    e("s_mul_i32 s24, s24, 1792"); e("s_mul_i32 s25, s25, 896"); e("s_add_u32 s24, s24, s25"); e("s_lshl_b32 s23, s20, 7"); e("s_add_u32 s24, s24, s23")
    e("v_and_b32 v4, 7, v2"); e("v_mul_u32_u24 v4, 1792, v4"); e("v_lshrrev_b32 v5, 3, v2"); e("v_lshl_add_u32 v4, v5, 4, v4")
    for h in range(16):
        e(f"s_waitcnt vmcnt({15-h})")
        for k in range(4):
            src = 16 + 4*h + k
            if h == 0:
                e(f"v_lshlrev_b32 v{8+2*k}, 16, v{src}"); e(f"v_and_b32 v{9+2*k}, 0xffff0000, v{src}")
            else:
                e(f"v_lshlrev_b32 v6, 16, v{src}"); e(f"v_and_b32 v7, 0xffff0000, v{src}")
                e(f"v_add_f32 v{8+2*k}, v{8+2*k}, v6"); e(f"v_add_f32 v{9+2*k}, v{9+2*k}, v7")
    for k in range(4): e(f"v_cvt_pk_bf16_f32 v{16+k}, v{8+2*k}, v{9+2*k}")
    e("buffer_store_dwordx4 v[16:19], v4, s[12:15], s24 offen")
    E.label("L2_end"); e("s_endpgm")
    return E

def kd(name, vgpr, sgpr, accum):
    return f""".p2align 6
.amdhsa_kernel {name}
  .amdhsa_next_free_vgpr {vgpr}
  .amdhsa_next_free_sgpr {sgpr}
  .amdhsa_accum_offset {accum}
  .amdhsa_group_segment_fixed_size 0
  .amdhsa_kernarg_size 104
  .amdhsa_user_sgpr_count 2
  .amdhsa_user_sgpr_kernarg_segment_ptr 1
  .amdhsa_system_sgpr_workgroup_id_x 1
  .amdhsa_float_denorm_mode_32 3
.end_amdhsa_kernel
"""
def build(cfg):
    k1 = gen_k1(cfg); k2 = gen_k2(cfg)
    s = f"; @launch kernel={KN} grid=(256,1,1) block=(256,1,1) lds=163840\n"
    s += f"; @launch kernel=reduce_kernel grid=(256,1,1) block=(448,1,1) lds=0\n"
    s += '.amdgcn_target "amdgcn-amd-amdhsa--gfx950"\n.text\n'
    s += f".globl {KN}\n.p2align 8\n.type {KN},@function\n{KN}:\n" + k1.text()
    s += f".globl reduce_kernel\n.p2align 8\n.type reduce_kernel,@function\nreduce_kernel:\n" + k2.text()
    s += '.section .rodata,"a"\n' + kd(KN, 512, 102, 256) + kd("reduce_kernel", 80, 32, 80)
    return s, k1
if __name__ == "__main__":
    cfg = {}
    s, k1 = build(cfg)
    open(sys.argv[1] if len(sys.argv) > 1 else "k.s", "w").write(s)
    print("nops inserted", k1.nops, "lines", len(k1.lines))
    for t in plan(cfg): print(t.typ + str(t.idx), "slot", t.slot, "issue", t.issue_step, "read", t.read_step, end=" | ")
```
